```python
import torch

def _softmax(x, axis=-1):
    return torch.softmax(x, dim=axis)
def _gelu(x):
    return torch.nn.functional.gelu(x, approximate="tanh")
def _silu(x):
    return torch.nn.functional.silu(x)
def _sigmoid(x):
    return torch.sigmoid(x)
def _layernorm(x, axis=-1, eps=1e-5):
    m = x.mean(dim=axis, keepdim=True)
    v = x.var(dim=axis, keepdim=True, unbiased=False)
    return (x - m) / torch.sqrt(v + eps)
def _scatter_add(tgt, idx, src, axis=0):
    return tgt.clone().index_add_(axis, idx, src)
def _segment_sum(src, seg, n):
    out = torch.zeros((n,) + src.shape[1:], dtype=src.dtype)
    return out.index_add_(0, seg, src)
def _pad(x, pw):
    flat = tuple(v for pair in reversed(pw) for v in pair)
    return torch.nn.functional.pad(x, flat)

kernel_name = 'standalone__gqa_block_cached__decode'

def setup_inputs():

    _w = (lambda a: (lambda t: t.to(torch.bfloat16) if t.is_floating_point() else t)(torch.as_tensor(a)))
    B, Sq, D = 8, 1, 512
    Hq, Hkv, Sk, Dh = 32, 8, 4096, 128
    assert Hq % Hkv == 0, (Hq, Hkv)
    return {
        "x": _w((lambda *s: torch.randn(*s, dtype=torch.bfloat16) * 0.8)(B, Sq, D)),
        "k_cache": _w((lambda *s: torch.randn(*s, dtype=torch.bfloat16) * 0.8)(B, Hkv, Sk, Dh)),
        "v_cache": _w((lambda *s: torch.randn(*s, dtype=torch.bfloat16) * 0.05)(B, Hkv, Sk, Dh)),
        "wq": _w((lambda *s: torch.randn(*s, dtype=torch.bfloat16) * 0.8)(D, Hq * Dh) * (D ** -0.5)),
        "wo": _w((lambda *s: torch.randn(*s, dtype=torch.bfloat16) * 0.05)(Hq * Dh, D) * ((Hq * Dh) ** -0.5)),
    }

def reference(x, k_cache, v_cache, wq, wo):
    B, Sq, D = x.shape
    Hq, Dh = 32, 128
    Hkv = k_cache.shape[1]
    rep = Hq // Hkv
    q = (lambda x, *d: x.permute(*d))((x @ wq).reshape(B, Sq, Hq, Dh), 0, 2, 1, 3)
    k = (lambda x, n, axis: torch.repeat_interleave(x, n, dim=axis))(k_cache, rep, axis=1)
    v = (lambda x, n, axis: torch.repeat_interleave(x, n, dim=axis))(v_cache, rep, axis=1)
    scores = torch.einsum("bhqd,bhkd->bhqk", q, k) * (Dh ** -0.5)
    p = _softmax(scores, axis=-1)
    o = torch.einsum("bhqk,bhkd->bhqd", p, v)
    return (lambda x, *d: x.permute(*d))(o, 0, 2, 1, 3).reshape(B, Sq, Hq * Dh) @ wo
```

```python
import sys, struct
KN = "standalone__gqa_block_cached__decode_kernel"
HEADER = open("standalone__gqa_block_cached__decode.s.ref").read().split("; Override launch")[0]

def f2u(f): return struct.unpack("<I", struct.pack("<f", f))[0]

def gen(nt=True, W=10, stamps=False, spin=20000, hashm=(5, 11)):
    L = []
    def A(s): L.append("    " + s)
    def LB(s): L.append(s + ":")
    NT = " nt" if nt else ""
    LDS_WQ, LDS_WO, LDS_Q, LDS_ML, LDS_O = 0, 16384, 32768, 36864, 37120
    LDS_TOTAL = 40960
    Q_BASE, P1O_BASE, P1ML_BASE, Y_BASE = 0, 1 << 20, 2 << 20, 3 << 20
    WS_SIZE = 4 << 20
    vLANE, vOK, vOV, vM0, vM1 = 1, 2, 3, 4, 5
    QF = 16; DT = 32; S = 64; AW = 96; OA = 108; T = 116; R = 128
    sK, sV, sWS, sDBG, sOUT, sX, sWQ, sWO = 20, 24, 28, 32, 36, 40, 44, 48
    sB, sR, sHKV, sS, sHS, sC, sT0, sT1, sT2, sCNT = 52, 53, 54, 55, 56, 57, 58, 59, 60, 61
    sEX = 62
    sST = 64
    nst = [0]
    def stamp():
        if stamps:
            A(f"s_memrealtime s[{sST+2*nst[0]}:{sST+2*nst[0]+1}]")
        nst[0] += 1
    def srd(d, lo, hi, nrec):
        A(f"s_mov_b32 s{d}, s{lo}"); A(f"s_and_b32 s{d+1}, s{hi}, 0xffff")
        A(f"s_mov_b32 s{d+2}, {nrec:#x}"); A(f"s_mov_b32 s{d+3}, 0x20000")

    L.append(HEADER.rstrip())
    L.append(f"; @launch grid=(256,1,1) block=(512,1,1) lds={LDS_TOTAL}")
    L.append('.amdgcn_target "amdgcn-amd-amdhsa--gfx950"')
    L.append(".text"); L.append(f".globl {KN}"); L.append(".p2align 8"); L.append(f".type {KN},@function")
    LB(KN)
    A("s_cmp_ge_u32 s2, 256"); A("s_cbranch_scc1 L_end")
    A("s_load_dwordx16 s[4:19], s[0:1], 0")
    stamp()
    A("v_lshrrev_b32 v6, 6, v0")
    A(f"v_and_b32 v{vLANE}, 63, v0")
    A("v_readfirstlane_b32 s3, v6")
    A(f"s_and_b32 s{sB}, s2, 7")
    A(f"s_lshr_b32 s{sR}, s2, 3")
    A(f"s_lshr_b32 s{sHKV}, s{sR}, 2")
    A(f"s_and_b32 s{sS}, s{sR}, 3")
    A(f"v_and_b32 v6, 15, v{vLANE}")
    A(f"v_lshrrev_b32 v7, 4, v{vLANE}")
    A(f"v_lshrrev_b32 v8, 2, v6")
    A(f"v_and_b32 v9, 3, v6")
    A(f"v_lshlrev_b32 v{vOK}, 8, v8")
    A(f"v_lshl_add_u32 v{vOK}, v9, 6, v{vOK}")
    A(f"v_lshl_add_u32 v{vOK}, v7, 4, v{vOK}")
    A(f"v_lshlrev_b32 v{vOV}, 4, v{vLANE}")
    A(f"v_and_b32 v10, 1, v{vLANE}")
    A(f"v_lshlrev_b32 v10, 4, v10")
    A(f"v_mov_b32 v11, 0xffff")
    A(f"v_lshlrev_b32 v11, v10, v11")
    A(f"v_bfe_i32 v10, v{vLANE}, 1, 1")
    A(f"v_and_b32 v{vM1}, v11, v10")
    A(f"v_xor_b32 v{vM0}, v11, v{vM1}")
    for z in (0, 1, 4, 5, 8, 9): A(f"v_mov_b32 v{AW+z}, 0")
    A(f"s_lshl_b32 s{sT0}, s{sB}, 23")
    A(f"s_lshl_b32 s{sT1}, s{sR}, 18")
    A(f"s_add_u32 s{sT0}, s{sT0}, s{sT1}")
    A(f"s_lshl_b32 s{sT1}, s3, 15")
    A(f"s_add_u32 s{sT0}, s{sT0}, s{sT1}")
    A(f"s_mul_i32 s{sHS}, s2, {hashm[0]}")
    A(f"s_mul_i32 s{sT1}, s3, {hashm[1]}")
    A(f"s_add_u32 s{sHS}, s{sHS}, s{sT1}")
    A(f"s_and_b32 s{sHS}, s{sHS}, 31")
    A(f"s_lshl_b32 s{sHS}, s{sHS}, 10")
    A(f"s_mov_b32 s{sC}, {f2u(0.08838834764831845*1.4426950408889634):#x}")
    A("s_waitcnt lgkmcnt(0)")
    A(f"s_add_u32 s{sK}, s6, s{sT0}"); A(f"s_addc_u32 s{sK+1}, s7, 0"); A(f"s_and_b32 s{sK+1}, s{sK+1}, 0xffff")
    A(f"s_mov_b32 s{sK+2}, 0x8000"); A(f"s_mov_b32 s{sK+3}, 0x20000")
    A(f"s_add_u32 s{sV}, s8, s{sT0}"); A(f"s_addc_u32 s{sV+1}, s9, 0"); A(f"s_and_b32 s{sV+1}, s{sV+1}, 0xffff")
    A(f"s_mov_b32 s{sV+2}, 0x8000"); A(f"s_mov_b32 s{sV+3}, 0x20000")
    def kload(i):
        A(f"s_xor_b32 s{sT2}, s{sHS}, {i*1024}")
        A(f"buffer_load_dwordx4 v[{R+4*i}:{R+4*i+3}], v{vOK}, s[{sK}:{sK+3}], s{sT2} offen{NT}")
    def vload(i):
        A(f"s_xor_b32 s{sT2}, s{sHS}, {i*1024}")
        A(f"buffer_load_dwordx4 v[{R+4*i}:{R+4*i+3}], v{vOV}, s[{sV}:{sV+3}], s{sT2} offen{NT}")
    srd(sWS, 18, 19, WS_SIZE)
    srd(sDBG, 16, 17, 256)
    srd(sOUT, 14, 15, 8192)
    srd(sX, 4, 5, 8192)
    srd(sWQ, 10, 11, 4 << 20)
    srd(sWO, 12, 13, 4 << 20)
    A("s_cmp_eq_u32 s3, 0"); A("s_cbranch_scc1 L_service")
    A("s_cmp_lg_u32 s3, 1"); A("s_cbranch_scc1 L_kl")
    A(f"v_lshrrev_b32 v10, 3, v{vLANE}"); A("v_lshlrev_b32 v10, 10, v10")
    A(f"v_and_b32 v11, 7, v{vLANE}"); A("v_lshl_add_u32 v10, v11, 4, v10")
    A(f"s_lshl_b32 s{sT0}, s{sR}, 17"); A(f"s_lshl_b32 s{sT1}, s{sB}, 7"); A(f"s_add_u32 s{sT0}, s{sT0}, s{sT1}")
    for k in range(16):
        A(f"s_mov_b32 m0, {LDS_WO + k*1024}")
        A(f"s_add_u32 s{sT1}, s{sT0}, {k*8192}")
        A(f"buffer_load_dwordx4 v10, s[{sWO}:{sWO+3}], s{sT1} offen{NT} lds")
    LB("L_kl")
    for i in range(32):
        if i >= W: A(f"s_waitcnt vmcnt({W-1})")
        kload(i)
    A("s_barrier")
    A(f"v_add_u32 v10, {LDS_Q}, v{vOV}")
    for v in range(4):
        A(f"ds_read_b128 v[{QF+4*v}:{QF+4*v+3}], v10 offset:{v*1024}")
    A("s_waitcnt lgkmcnt(0)")
    A("s_branch L_main")
    LB("L_service")
    A(f"v_lshrrev_b32 v10, 1, v{vLANE}"); A("v_lshlrev_b32 v10, 13, v10")
    A(f"v_and_b32 v11, 1, v{vLANE}"); A("v_lshl_add_u32 v10, v11, 4, v10")
    A(f"s_lshl_b32 s{sT0}, s{sB}, 10"); A(f"s_lshl_b32 s{sT1}, s{sR}, 5"); A(f"s_add_u32 s{sT0}, s{sT0}, s{sT1}")
    for k in range(16):
        A(f"s_mov_b32 m0, {LDS_WQ + k*1024}")
        A(f"s_add_u32 s{sT1}, s{sT0}, {k*262144}")
        A(f"buffer_load_dwordx4 v10, s[{sWQ}:{sWQ+3}], s{sT1} offen lds")
    A("v_lshlrev_b32 v10, 10, v6"); A("v_lshl_add_u32 v10, v7, 4, v10")
    for t in range(16):
        A(f"buffer_load_dwordx4 v[{R+4*t}:{R+4*t+3}], v10, s[{sX}:{sX+3}], 0 offen offset:{t*64}")
    for k in range(4): A(f"v_mov_b32 v{T+k}, -1")
    A(f"v_lshrrev_b32 v11, 5, v{vLANE}"); A(f"v_and_b32 v12, 31, v{vLANE}")
    A("v_lshlrev_b32 v13, 14, v11"); A("v_lshl_add_u32 v13, v12, 4, v13")
    A(f"s_lshl_b32 s{sT1}, s{sHKV}, 16"); A(f"s_lshl_b32 s{sT2}, s{sB}, 11"); A(f"s_add_u32 s{sT1}, s{sT1}, s{sT2}")
    A(f"s_lshl_b32 s{sT2}, s{sS}, 9"); A(f"s_add_u32 s{sT1}, s{sT1}, s{sT2}"); A(f"s_add_u32 s{sT1}, s{sT1}, {P1O_BASE}")
    A(f"buffer_store_dwordx4 v[{T}:{T+3}], v13, s[{sWS}:{sWS+3}], s{sT1} offen sc1")
    A(f"s_add_u32 s{sT1}, s{sT1}, 32768")
    A(f"buffer_store_dwordx4 v[{T}:{T+3}], v13, s[{sWS}:{sWS+3}], s{sT1} offen sc1")
    A(f"s_lshl_b32 s{sT1}, s{sB}, 5"); A(f"s_add_u32 s{sT1}, s{sT1}, s{sR}"); A(f"s_lshl_b32 s{sT1}, s{sT1}, 11"); A(f"s_add_u32 s{sT1}, s{sT1}, {Y_BASE}")
    A(f"buffer_store_dwordx4 v[{T}:{T+3}], v{vOV}, s[{sWS}:{sWS+3}], s{sT1} offen sc1")
    A(f"buffer_store_dwordx4 v[{T}:{T+3}], v{vOV}, s[{sWS}:{sWS+3}], s{sT1} offen offset:1024 sc1")
    A(f"v_lshlrev_b32 v13, 8, v{vLANE}")
    A(f"s_lshl_b32 s{sT1}, s{sHKV}, 10"); A(f"s_lshl_b32 s{sT2}, s{sB}, 5"); A(f"s_add_u32 s{sT1}, s{sT1}, s{sT2}")
    A(f"s_lshl_b32 s{sT2}, s{sS}, 3"); A(f"s_add_u32 s{sT1}, s{sT1}, s{sT2}"); A(f"s_add_u32 s{sT1}, s{sT1}, {P1ML_BASE}")
    A("s_mov_b64 exec, 0xf")
    A(f"buffer_store_dwordx2 v[{T}:{T+1}], v13, s[{sWS}:{sWS+3}], s{sT1} offen sc1")
    A("s_mov_b64 exec, -1")
    A("v_lshlrev_b32 v11, 3, v7"); A("v_add_u32 v11, v11, v8"); A("v_lshlrev_b32 v11, 5, v11"); A("v_lshl_add_u32 v11, v9, 3, v11")
    A("s_waitcnt vmcnt(5)")
    stamp()
    WF = R + 64
    for t in range(16):
        A(f"ds_read_b64_tr_b16 v[{WF+4*t}:{WF+4*t+1}], v11 offset:{LDS_WQ + t*1024}")
        A(f"ds_read_b64_tr_b16 v[{WF+4*t+2}:{WF+4*t+3}], v11 offset:{LDS_WQ + t*1024 + 128}")
    A("s_waitcnt lgkmcnt(0)")
    for t in range(16):
        c = "0" if t == 0 else f"v[{DT}:{DT+3}]"
        A(f"v_mfma_f32_16x16x32_bf16 v[{DT}:{DT+3}], v[{WF+4*t}:{WF+4*t+3}], v[{R+4*t}:{R+4*t+3}], {c}")
    A("v_lshlrev_b32 v12, 13, v6"); A("v_lshl_add_u32 v12, v7, 3, v12")
    A("v_cmp_gt_u32 vcc, 8, v6")
    A("s_nop 7")
    A(f"v_cvt_pk_bf16_f32 v{T}, v{DT}, v{DT+1}")
    A(f"v_cvt_pk_bf16_f32 v{T+1}, v{DT+2}, v{DT+3}")
    A(f"s_and_saveexec_b64 s[{sEX}:{sEX+1}], vcc")
    A(f"buffer_store_dwordx2 v[{T}:{T+1}], v12, s[{sWS}:{sWS+3}], s{sT0} offen sc1")
    A("s_mov_b64 exec, -1")
    A("v_mov_b32 v12, 1")
    A(f"s_lshl_b32 s{sT1}, s{sB}, 5")
    A("v_mov_b32 v13, 0")
    A("s_waitcnt vmcnt(0)")
    stamp()
    A("s_mov_b64 exec, 1")
    A(f"buffer_atomic_add v12, v13, s[{sDBG}:{sDBG+3}], s{sT1} offen")
    A("s_mov_b64 exec, 0xff")
    A(f"v_lshlrev_b32 v13, 5, v{vLANE}")
    A(f"s_mov_b32 s{sCNT}, {spin}")
    LB("L_pollq")
    A(f"buffer_load_dword v12, v13, s[{sDBG}:{sDBG+3}], 0 offen sc1")
    A("s_waitcnt vmcnt(0)")
    A("v_cmp_ne_u32 vcc, 32, v12")
    A("s_nop 1")
    A("s_cbranch_vccz L_qready")
    A("s_sleep 2")
    A(f"s_sub_u32 s{sCNT}, s{sCNT}, 1"); A(f"s_cmp_lg_u32 s{sCNT}, 0"); A("s_cbranch_scc1 L_pollq")
    LB("L_qready")
    A("s_mov_b64 exec, -1")
    stamp()
    A("v_lshlrev_b32 v12, 8, v8"); A("v_lshl_add_u32 v12, v7, 4, v12")
    A(f"s_lshl_b32 s{sT1}, s{sB}, 13"); A(f"s_lshl_b32 s{sT2}, s{sHKV}, 10"); A(f"s_add_u32 s{sT1}, s{sT1}, s{sT2}")
    for v in range(4):
        A(f"buffer_load_dwordx4 v[{QF+4*v}:{QF+4*v+3}], v12, s[{sWS}:{sWS+3}], s{sT1} offen offset:{v*64} sc1")
    A(f"v_add_u32 v10, {LDS_Q}, v{vOV}")
    A("s_waitcnt vmcnt(0)")
    for v in range(4):
        A(f"ds_write_b128 v10, v[{QF+4*v}:{QF+4*v+3}] offset:{v*1024}")
    A("s_waitcnt lgkmcnt(0)")
    A("s_barrier")
    stamp()
    for i in range(32): kload(i)
    LB("L_main")
    if stamps: nst[0] = 5
    def adds(i):
        d = DT + 16*(i & 1)
        A(f"v_add_f32 v{S+i}, v{d}, v{d+5}")
        A(f"v_add_f32 v{T}, v{d+10}, v{d+15}")
        A(f"v_add_f32 v{S+i}, v{S+i}, v{T}")
    for i in range(32):
        A("s_waitcnt vmcnt(31)")
        d = DT + 16*(i & 1)
        for v in range(4):
            A(f"v_mfma_f32_16x16x32_bf16 v[{d+4*v}:{d+4*v+3}], v[{R+4*i}:{R+4*i+3}], v[{QF+4*v}:{QF+4*v+3}], 0")
        vload(i)
        if i > 0: adds(i-1)
    A("s_nop 7")
    adds(31)
    stamp()
    vM, vL, vT1, vT2 = T+1, T+2, T+3, T+4
    A(f"v_max3_f32 v{vM}, v{S}, v{S+1}, v{S+2}")
    for i in range(3, 31, 2):
        A(f"v_max3_f32 v{vM}, v{vM}, v{S+i}, v{S+i+1}")
    A(f"v_max_f32 v{vM}, v{vM}, v{S+31}")
    def xreduce(v, op, tmp):
        for sw in ("v_permlane16_swap_b32", "v_permlane32_swap_b32"):
            A(f"v_mov_b32 v{tmp}, v{v}")
            A("s_nop 1")
            A(f"{sw} v{tmp}, v{v}")
            A("s_nop 1")
            A(f"{op} v{v}, v{v}, v{tmp}")
    xreduce(vM, "v_max_f32", vT1)
    A(f"v_mul_f32 v{vM}, s{sC}, v{vM}")
    A(f"v_mov_b32 v{vL}, 0")
    for i in range(32):
        A(f"v_fma_f32 v{S+i}, v{S+i}, s{sC}, -v{vM}")
    for i in range(32):
        A(f"v_exp_f32 v{S+i}, v{S+i}")
    for i in range(32):
        A(f"v_add_f32 v{vL}, v{vL}, v{S+i}")
        A(f"v_cvt_pk_bf16_f32 v{S+i}, v{S+i}, v{S+i}")
    xreduce(vL, "v_add_f32", vT1)
    A("v_lshlrev_b32 v10, 6, v8")
    A(f"s_lshl_b32 s{sT1}, s3, 3"); A(f"s_add_u32 s{sT1}, s{sT1}, {LDS_ML}")
    A(f"v_add_u32 v10, s{sT1}, v10")
    A(f"v_mov_b32 v{T+6}, v{vM}"); A(f"v_mov_b32 v{T+7}, v{vL}")
    A("s_mov_b64 exec, 0x1111")
    A(f"ds_write_b64 v10, v[{T+6}:{T+7}]")
    A("s_mov_b64 exec, -1")
    def ands(i):
        w = AW + 2 + 4*(i & 1)
        A(f"v_and_b32 v{w}, v{S+i}, v{vM0}")
        A(f"v_and_b32 v{w+1}, v{S+i}, v{vM1}")
    ands(0)
    for i in range(32):
        if i < 31: ands(i+1)
        else: A("s_nop 1")
        A(f"s_waitcnt vmcnt({31-i})")
        w = AW + 4*(i & 1)
        clo = "0" if i == 0 else f"v[{OA}:{OA+3}]"
        chi = "0" if i == 0 else f"v[{OA+4}:{OA+7}]"
        A(f"v_mfma_f32_16x16x32_bf16 v[{OA}:{OA+3}], v[{w+2}:{w+5}], v[{R+4*i}:{R+4*i+3}], {clo}")
        A(f"v_mfma_f32_16x16x32_bf16 v[{OA+4}:{OA+7}], v[{w}:{w+3}], v[{R+4*i}:{R+4*i+3}], {chi}")
    A("v_lshlrev_b32 v10, 9, v7"); A("v_lshl_add_u32 v10, v6, 5, v10")
    A(f"s_lshl_b32 s{sT1}, s3, 11"); A(f"s_add_u32 s{sT1}, s{sT1}, {LDS_WQ}")
    A(f"v_add_u32 v10, s{sT1}, v10")
    A("s_nop 4")
    stamp()
    A(f"ds_write_b128 v10, v[{OA}:{OA+3}]")
    A(f"ds_write_b128 v10, v[{OA+4}:{OA+7}] offset:16")
    A("s_waitcnt lgkmcnt(0)")
    A("s_barrier")
    stamp()
    A("s_cmp_ge_u32 s3, 4"); A("s_cbranch_scc1 L_notr")
    A("v_lshlrev_b32 v11, 3, v7"); A("v_add_u32 v11, v11, v8"); A("v_lshlrev_b32 v11, 7, v11"); A("v_lshl_add_u32 v11, v9, 3, v11")
    A(f"s_lshl_b32 s{sT1}, s3, 5"); A(f"v_add_u32 v11, s{sT1}, v11")
    WO = R + 96
    for t in range(4):
        A(f"ds_read_b64_tr_b16 v[{WO+4*t}:{WO+4*t+1}], v11 offset:{LDS_WO + t*4096}")
        A(f"ds_read_b64_tr_b16 v[{WO+4*t+2}:{WO+4*t+3}], v11 offset:{LDS_WO + t*4096 + 512}")
    LB("L_notr")
    A("s_cmp_ge_u32 s3, 2"); A("s_cbranch_scc1 L_poll1")
    A(f"v_lshrrev_b32 v11, 5, v{vLANE}"); A(f"v_and_b32 v12, 31, v{vLANE}")
    A(f"s_lshl_b32 s{sT1}, s3, 1"); A(f"v_add_u32 v13, s{sT1}, v11")
    A(f"v_lshlrev_b32 v14, 6, v13"); A(f"v_add_u32 v14, {LDS_ML}, v14")
    ML = R; CO = R + 16
    for k in range(4):
        A(f"ds_read_b128 v[{ML+4*k}:{ML+4*k+3}], v14 offset:{k*16}")
    A("v_lshlrev_b32 v14, 9, v13"); A("v_lshl_add_u32 v14, v12, 4, v14")
    for w in range(8):
        A(f"ds_read_b128 v[{CO+4*w}:{CO+4*w+3}], v14 offset:{LDS_WQ + w*2048}")
    A("s_waitcnt lgkmcnt(8)")
    mreg = [ML + 2*w for w in range(8)]; lreg = [ML + 2*w + 1 for w in range(8)]
    A(f"v_max3_f32 v{T}, v{mreg[0]}, v{mreg[1]}, v{mreg[2]}")
    A(f"v_max3_f32 v{T}, v{T}, v{mreg[3]}, v{mreg[4]}")
    A(f"v_max3_f32 v{T}, v{T}, v{mreg[5]}, v{mreg[6]}")
    A(f"v_max_f32 v{T}, v{T}, v{mreg[7]}")
    for w in range(8): A(f"v_sub_f32 v{mreg[w]}, v{mreg[w]}, v{T}")
    for w in range(8): A(f"v_exp_f32 v{mreg[w]}, v{mreg[w]}")
    A("s_nop 0")
    A(f"v_mul_f32 v{T+1}, v{mreg[0]}, v{lreg[0]}")
    for w in range(1, 8): A(f"v_fmac_f32 v{T+1}, v{mreg[w]}, v{lreg[w]}")
    A("s_waitcnt lgkmcnt(0)")
    for e in range(4): A(f"v_mul_f32 v{T+4+e}, v{mreg[0]}, v{CO+e}")
    for w in range(1, 8):
        for e in range(4): A(f"v_fmac_f32 v{T+4+e}, v{mreg[w]}, v{CO+4*w+e}")
    for e in (0, 1, 4, 5, 6, 7): A(f"v_min_u32 v{T+e}, 0xfffffffe, v{T+e}")
    A("v_lshlrev_b32 v13, 14, v11"); A("v_lshl_add_u32 v13, v12, 4, v13")
    A(f"s_lshl_b32 s{sT1}, s{sHKV}, 16"); A(f"s_lshl_b32 s{sT2}, s{sB}, 11"); A(f"s_add_u32 s{sT1}, s{sT1}, s{sT2}")
    A(f"s_lshl_b32 s{sT2}, s{sS}, 9"); A(f"s_add_u32 s{sT1}, s{sT1}, s{sT2}"); A(f"s_add_u32 s{sT1}, s{sT1}, {P1O_BASE}")
    A(f"s_lshl_b32 s{sT2}, s3, 15"); A(f"s_add_u32 s{sT1}, s{sT1}, s{sT2}")
    A(f"buffer_store_dwordx4 v[{T+4}:{T+7}], v13, s[{sWS}:{sWS+3}], s{sT1} offen sc1")
    A("v_lshlrev_b32 v13, 8, v11")
    A(f"s_lshl_b32 s{sT1}, s{sHKV}, 10"); A(f"s_lshl_b32 s{sT2}, s{sB}, 5"); A(f"s_add_u32 s{sT1}, s{sT1}, s{sT2}")
    A(f"s_lshl_b32 s{sT2}, s{sS}, 3"); A(f"s_add_u32 s{sT1}, s{sT1}, s{sT2}"); A(f"s_add_u32 s{sT1}, s{sT1}, {P1ML_BASE}")
    A(f"s_lshl_b32 s{sT2}, s3, 9"); A(f"s_add_u32 s{sT1}, s{sT1}, s{sT2}")
    A("s_mov_b32 exec_lo, 1"); A("s_mov_b32 exec_hi, 1")
    A(f"buffer_store_dwordx2 v[{T}:{T+1}], v13, s[{sWS}:{sWS+3}], s{sT1} offen sc1")
    A("s_mov_b64 exec, -1")
    stamp()
    LB("L_poll1")
    if stamps: nst[0] = 9
    A(f"v_lshlrev_b32 v12, 3, v{vLANE}")
    A("v_mov_b32 v13, 0")
    A(f"s_lshl_b32 s{sT0}, s{sR}, 3"); A(f"s_add_u32 s{sT0}, s{sT0}, s3")
    A(f"s_lshl_b32 s{sT1}, s{sT0}, 11"); A(f"s_add_u32 s{sT1}, s{sT1}, {P1O_BASE}")
    A(f"s_lshl_b32 s{sT2}, s{sT0}, 5"); A(f"s_add_u32 s{sT2}, s{sT2}, {P1ML_BASE}")
    A(f"s_mov_b32 s{sCNT}, {spin}")
    PO = R + 64; PM = R + 72
    LB("L_poll1_loop")
    for s in range(4):
        A(f"buffer_load_dwordx2 v[{PO+2*s}:{PO+2*s+1}], v12, s[{sWS}:{sWS+3}], s{sT1} offen offset:{s*512} sc1")
    A(f"buffer_load_dwordx4 v[{PM}:{PM+3}], v13, s[{sWS}:{sWS+3}], s{sT2} offen sc1")
    A(f"buffer_load_dwordx4 v[{PM+4}:{PM+7}], v13, s[{sWS}:{sWS+3}], s{sT2} offen offset:16 sc1")
    A("s_waitcnt vmcnt(0)")
    A(f"v_max3_u32 v14, v{PO}, v{PO+1}, v{PO+2}")
    for k in range(3, 15, 2): A(f"v_max3_u32 v14, v14, v{PO+k}, v{PO+k+1}")
    A(f"v_max_u32 v14, v14, v{PO+15}")
    A("v_cmp_eq_u32 vcc, -1, v14")
    A("s_nop 1")
    A("s_cbranch_vccz L_poll1_done")
    A("s_sleep 1")
    A(f"s_sub_u32 s{sCNT}, s{sCNT}, 1"); A(f"s_cmp_lg_u32 s{sCNT}, 0"); A("s_cbranch_scc1 L_poll1_loop")
    LB("L_poll1_done")
    stamp()
    mr = [PM + 2*s for s in range(4)]; lr = [PM + 2*s + 1 for s in range(4)]
    A(f"v_max3_f32 v{T}, v{mr[0]}, v{mr[1]}, v{mr[2]}")
    A(f"v_max_f32 v{T}, v{T}, v{mr[3]}")
    for s in range(4): A(f"v_sub_f32 v{mr[s]}, v{mr[s]}, v{T}")
    for s in range(4): A(f"v_exp_f32 v{mr[s]}, v{mr[s]}")
    A("s_nop 0")
    A(f"v_mul_f32 v{T+1}, v{mr[0]}, v{lr[0]}")
    for s in range(1, 4): A(f"v_fmac_f32 v{T+1}, v{mr[s]}, v{lr[s]}")
    A(f"v_rcp_f32 v{T+1}, v{T+1}")
    A(f"v_mul_f32 v{T+2}, v{mr[0]}, v{PO}"); A(f"v_mul_f32 v{T+3}, v{mr[0]}, v{PO+1}")
    for s in range(1, 4):
        A(f"v_fmac_f32 v{T+2}, v{mr[s]}, v{PO+2*s}"); A(f"v_fmac_f32 v{T+3}, v{mr[s]}, v{PO+2*s+1}")
    A(f"v_mul_f32 v{T+2}, v{T+2}, v{T+1}"); A(f"v_mul_f32 v{T+3}, v{T+3}, v{T+1}")
    A(f"v_cvt_pk_bf16_f32 v{T+2}, v{T+2}, v{T+3}")
    A(f"s_mul_i32 s{sT1}, s3, 272"); A(f"s_add_u32 s{sT1}, s{sT1}, {LDS_O}")
    A(f"v_lshlrev_b32 v12, 2, v{vLANE}"); A(f"v_add_u32 v12, s{sT1}, v12")
    A(f"ds_write_b32 v12, v{T+2}")
    A("s_waitcnt lgkmcnt(0)")
    A("s_barrier")
    A("s_cmp_eq_u32 s3, 4"); A("s_cbranch_scc1 L_reduce")
    A("s_cmp_ge_u32 s3, 4"); A("s_cbranch_scc1 L_fin")
    A("v_and_b32 v12, 7, v6"); A("v_mul_u32_u24 v12, 272, v12"); A("v_lshl_add_u32 v12, v7, 4, v12")
    OF = R + 80
    for t in range(4):
        A(f"ds_read_b128 v[{OF+4*t}:{OF+4*t+3}], v12 offset:{LDS_O + t*64}")
    A("v_lshlrev_b32 v13, 8, v6"); A("v_lshl_add_u32 v13, v7, 4, v13")
    A(f"s_lshl_b32 s{sT1}, s{sB}, 5"); A(f"s_add_u32 s{sT1}, s{sT1}, s{sR}"); A(f"s_lshl_b32 s{sT1}, s{sT1}, 11")
    A(f"s_lshl_b32 s{sT2}, s3, 6"); A(f"s_add_u32 s{sT1}, s{sT1}, s{sT2}"); A(f"s_add_u32 s{sT1}, s{sT1}, {Y_BASE}")
    A("v_cmp_gt_u32 vcc, 8, v6")
    A("s_waitcnt lgkmcnt(0)")
    for t in range(4):
        c = "0" if t == 0 else f"v[{DT}:{DT+3}]"
        A(f"v_mfma_f32_16x16x32_bf16 v[{DT}:{DT+3}], v[{WO+4*t}:{WO+4*t+3}], v[{OF+4*t}:{OF+4*t+3}], {c}")
    A("s_nop 7")
    for e in range(4): A(f"v_min_u32 v{DT+e}, 0xfffffffe, v{DT+e}")
    A(f"s_and_saveexec_b64 s[{sEX}:{sEX+1}], vcc")
    A(f"buffer_store_dwordx4 v[{DT}:{DT+3}], v13, s[{sWS}:{sWS+3}], s{sT1} offen sc1")
    A("s_mov_b64 exec, -1")
    stamp()
    A("s_branch L_fin")
    LB("L_reduce")
    A(f"v_lshrrev_b32 v12, 2, v{vLANE}"); A("v_lshlrev_b32 v12, 11, v12")
    A(f"v_and_b32 v13, 3, v{vLANE}"); A("v_lshl_add_u32 v12, v13, 4, v12")
    A(f"s_lshl_b32 s{sT1}, s{sB}, 16"); A(f"s_lshl_b32 s{sT2}, s{sHKV}, 8"); A(f"s_add_u32 s{sT1}, s{sT1}, s{sT2}")
    A(f"s_lshl_b32 s{sT2}, s{sS}, 6"); A(f"s_add_u32 s{sT1}, s{sT1}, s{sT2}"); A(f"s_add_u32 s{sT1}, s{sT1}, {Y_BASE}")
    A(f"s_add_u32 s{sT2}, s{sT1}, 32768")
    A(f"s_mov_b32 s{sCNT}, {spin}")
    YR = R
    LB("L_poll2_loop")
    A(f"buffer_load_dwordx4 v[{YR}:{YR+3}], v12, s[{sWS}:{sWS+3}], s{sT1} offen sc1")
    A(f"buffer_load_dwordx4 v[{YR+4}:{YR+7}], v12, s[{sWS}:{sWS+3}], s{sT2} offen sc1")
    A("s_waitcnt vmcnt(0)")
    A(f"v_max3_u32 v14, v{YR}, v{YR+1}, v{YR+2}")
    A(f"v_max3_u32 v14, v14, v{YR+3}, v{YR+4}")
    A(f"v_max3_u32 v14, v14, v{YR+5}, v{YR+6}")
    A(f"v_max_u32 v14, v14, v{YR+7}")
    A("v_cmp_eq_u32 vcc, -1, v14")
    A("s_nop 1")
    A("s_cbranch_vccz L_poll2_done")
    A("s_sleep 1")
    A(f"s_sub_u32 s{sCNT}, s{sCNT}, 1"); A(f"s_cmp_lg_u32 s{sCNT}, 0"); A("s_cbranch_scc1 L_poll2_loop")
    LB("L_poll2_done")
    for e in range(4): A(f"v_add_f32 v{YR+e}, v{YR+e}, v{YR+4+e}")
    A("s_nop 1")
    for rot in (8, 4):
        for e in range(4): A(f"v_add_f32_dpp v{YR+e}, v{YR+e}, v{YR+e} row_ror:{rot} row_mask:0xf bank_mask:0xf")
        A("s_nop 1")
    for sw in ("v_permlane16_swap_b32", "v_permlane32_swap_b32"):
        for e in range(4): A(f"v_mov_b32 v{YR+4+e}, v{YR+e}")
        A("s_nop 1")
        for e in range(4): A(f"{sw} v{YR+4+e}, v{YR+e}")
        A("s_nop 1")
        for e in range(4): A(f"v_add_f32 v{YR+e}, v{YR+e}, v{YR+4+e}")
    A(f"v_cvt_pk_bf16_f32 v{YR+8}, v{YR}, v{YR+1}")
    A(f"v_cvt_pk_bf16_f32 v{YR+9}, v{YR+2}, v{YR+3}")
    A(f"v_lshlrev_b32 v12, 3, v{vLANE}")
    A(f"s_lshl_b32 s{sT1}, s{sHKV}, 10"); A(f"s_lshl_b32 s{sT2}, s{sB}, 7"); A(f"s_add_u32 s{sT1}, s{sT1}, s{sT2}")
    A(f"s_lshl_b32 s{sT2}, s{sS}, 5"); A(f"s_add_u32 s{sT1}, s{sT1}, s{sT2}")
    A("s_mov_b64 exec, 0xf")
    A(f"buffer_store_dwordx2 v[{YR+8}:{YR+9}], v12, s[{sOUT}:{sOUT+3}], s{sT1} offen")
    A("s_mov_b64 exec, -1")
    if stamps:
        A("s_memrealtime s[90:91]")
        A("s_waitcnt lgkmcnt(0)")
        A("s_add_u32 s92, s18, 0x8000000"); A("s_addc_u32 s93, s19, 0"); A("s_and_b32 s93, s93, 0xffff"); A("s_mov_b32 s94, 0x100000"); A("s_mov_b32 s95, 0x20000")
        A(f"s_lshl_b32 s{sT1}, s2, 7")
        A("v_mov_b32 v13, 0")
        A("s_mov_b64 exec, 1")
        for slot, sr in ((11, 90), (12, sST+10), (13, sST+12), (14, sST+18)):
            A(f"v_mov_b32 v14, s{sr}"); A(f"v_mov_b32 v15, s{sr+1}")
            A(f"buffer_store_dwordx2 v[14:15], v13, s[92:95], s{sT1} offen offset:{slot*8}")
            A("s_nop 1")
        A("s_branch L_end")
    LB("L_fin")
    if stamps:
        A("s_cmp_lg_u32 s3, 0"); A("s_cbranch_scc1 L_end")
        A("s_waitcnt lgkmcnt(0)")
        A("s_add_u32 s92, s18, 0x8000000"); A("s_addc_u32 s93, s19, 0"); A("s_and_b32 s93, s93, 0xffff"); A("s_mov_b32 s94, 0x100000"); A("s_mov_b32 s95, 0x20000")
        A(f"s_lshl_b32 s{sT1}, s2, 7")
        A("v_mov_b32 v13, 0")
        A("s_mov_b64 exec, 1")
        for slot in range(11):
            A(f"v_mov_b32 v14, s{sST+2*slot}"); A(f"v_mov_b32 v15, s{sST+2*slot+1}")
            A(f"buffer_store_dwordx2 v[14:15], v13, s[92:95], s{sT1} offen offset:{slot*8}")
            A("s_nop 1")
        A("s_getreg_b32 s90, hwreg(HW_REG_XCC_ID)")
        A("v_mov_b32 v14, s90"); A("v_mov_b32 v15, 0")
        A(f"buffer_store_dwordx2 v[14:15], v13, s[92:95], s{sT1} offen offset:120")
    LB("L_end")
    A("s_endpgm")
    L.append('.section .rodata,"a"'); L.append(".p2align 6"); L.append(f".amdhsa_kernel {KN}")
    L.append("  .amdhsa_next_free_vgpr 256"); L.append("  .amdhsa_next_free_sgpr 96"); L.append("  .amdhsa_accum_offset 256")
    L.append("  .amdhsa_group_segment_fixed_size 0"); L.append("  .amdhsa_kernarg_size 64"); L.append("  .amdhsa_user_sgpr_count 2")
    L.append("  .amdhsa_user_sgpr_kernarg_segment_ptr 1"); L.append("  .amdhsa_system_sgpr_workgroup_id_x 1"); L.append(".end_amdhsa_kernel")
    return "\n".join(L) + "\n"

if __name__ == "__main__":
    from build import build
    open("v1.s", "w").write(gen())
    open("v1s.s", "w").write(gen(stamps=True))
    open("v1n.s", "w").write(gen(nt=False))
    for f in ("v1.s", "v1s.s", "v1n.s"):
        print(build(f))
```
